```python
import torch

def _softmax(x, axis=-1):
    return torch.softmax(x, dim=axis)
def _gelu(x):
    return torch.nn.functional.gelu(x, approximate="tanh")
def _silu(x):
    return torch.nn.functional.silu(x)
def _sigmoid(x):
    return torch.sigmoid(x)
def _layernorm(x, axis=-1, eps=1e-5):
    m = x.mean(dim=axis, keepdim=True)
    v = x.var(dim=axis, keepdim=True, unbiased=False)
    return (x - m) / torch.sqrt(v + eps)
def _scatter_add(tgt, idx, src, axis=0):
    return tgt.clone().index_add_(axis, idx, src)
def _segment_sum(src, seg, n):
    out = torch.zeros((n,) + src.shape[1:], dtype=src.dtype)
    return out.index_add_(0, seg, src)
def _pad(x, pw):
    flat = tuple(v for pair in reversed(pw) for v in pair)
    return torch.nn.functional.pad(x, flat)

kernel_name = 'concat_heads__mha_block_cached__mha_block_cached__near_ridge'

def setup_inputs():

    _w = (lambda a: (lambda t: t.to(torch.bfloat16) if t.is_floating_point() else t)(torch.as_tensor(a)))
    def _A_setup():
        B, Sq, D = 8, 144, 448
        H, Sk, Dh = 16, 512, 256
        return {
            "x": _w((lambda *s: torch.randn(*s, dtype=torch.bfloat16) * 0.8)(B, Sq, D)),
            "k_cache": _w((lambda *s: torch.randn(*s, dtype=torch.bfloat16) * 0.8)(B, H, Sk, Dh)),
            "v_cache": _w((lambda *s: torch.randn(*s, dtype=torch.bfloat16) * 0.05)(B, H, Sk, Dh)),
            "wq": _w((lambda *s: torch.randn(*s, dtype=torch.bfloat16) * 0.8)(D, H * Dh) * (D ** -0.5)),
            "wo": _w((lambda *s: torch.randn(*s, dtype=torch.bfloat16) * 0.05)(H * Dh, D) * ((H * Dh) ** -0.5)),
        }
    _A_in = _A_setup()

    def _B_setup():
        B, Sq, D = 8, 144, 448
        H, Sk, Dh = 16, 512, 256
        return {
            "x": _w((lambda *s: torch.randn(*s, dtype=torch.bfloat16) * 0.8)(B, Sq, D)),
            "k_cache": _w((lambda *s: torch.randn(*s, dtype=torch.bfloat16) * 0.8)(B, H, Sk, Dh)),
            "v_cache": _w((lambda *s: torch.randn(*s, dtype=torch.bfloat16) * 0.05)(B, H, Sk, Dh)),
            "wq": _w((lambda *s: torch.randn(*s, dtype=torch.bfloat16) * 0.8)(D, H * Dh) * (D ** -0.5)),
            "wo": _w((lambda *s: torch.randn(*s, dtype=torch.bfloat16) * 0.05)(H * Dh, D) * ((H * Dh) ** -0.5)),
        }
    _B_in = _B_setup()

    return {
        "A_x": _A_in["x"],
        "A_k_cache": _A_in["k_cache"],
        "A_v_cache": _A_in["v_cache"],
        "A_wq": _A_in["wq"],
        "A_wo": _A_in["wo"],
        "B_x": _B_in["x"],
        "B_k_cache": _B_in["k_cache"],
        "B_v_cache": _B_in["v_cache"],
        "B_wq": _B_in["wq"],
        "B_wo": _B_in["wo"],
    }

def reference(A_x, A_k_cache, A_v_cache, A_wq, A_wo, B_x, B_k_cache, B_v_cache, B_wq, B_wo):
    def _A_ref(x, k_cache, v_cache, wq, wo):
        B, Sq, D = x.shape
        H, Dh = 16, 256
        q = (lambda x, *d: x.permute(*d))((x @ wq).reshape(B, Sq, H, Dh), 0, 2, 1, 3)
        scores = torch.einsum("bhqd,bhkd->bhqk", q, k_cache) * (Dh ** -0.5)
        p = _softmax(scores, axis=-1)
        o = torch.einsum("bhqk,bhkd->bhqd", p, v_cache)
        return (lambda x, *d: x.permute(*d))(o, 0, 2, 1, 3).reshape(B, Sq, H * Dh) @ wo

    def _B_ref(x, k_cache, v_cache, wq, wo):
        B, Sq, D = x.shape
        H, Dh = 16, 256
        q = (lambda x, *d: x.permute(*d))((x @ wq).reshape(B, Sq, H, Dh), 0, 2, 1, 3)
        scores = torch.einsum("bhqd,bhkd->bhqk", q, k_cache) * (Dh ** -0.5)
        p = _softmax(scores, axis=-1)
        o = torch.einsum("bhqk,bhkd->bhqd", p, v_cache)
        return (lambda x, *d: x.permute(*d))(o, 0, 2, 1, 3).reshape(B, Sq, H * Dh) @ wo

    a = _A_ref(A_x, A_k_cache, A_v_cache, A_wq, A_wo)
    b = _B_ref(B_x, B_k_cache, B_v_cache, B_wq, B_wo)
    return torch.concatenate([a, b], axis=-1)
```

```python
import re

def R(kind, lo, n=1):
    return [(kind, lo + k) for k in range(n)]

def vr(lo, n=1):
    return f"v{lo}" if n == 1 else f"v[{lo}:{lo+n-1}]"
def ar(lo, n=1):
    return f"a{lo}" if n == 1 else f"a[{lo}:{lo+n-1}]"

class Reg:
    __slots__ = ("k", "b", "n")
    def __init__(self, k, b, n=1):
        self.k, self.b, self.n = k, b, n
    def __str__(self):
        return (vr if self.k == 'v' else ar)(self.b, self.n)
    def ids(self):
        return R(self.k, self.b, self.n)
    def sub(self, off, n=1):
        assert off + n <= self.n
        return Reg(self.k, self.b + off, n)

class Asm:
    def __init__(self):
        self.lines = []
        self.pos = 0
        self.lgkm = []
        self.vm = []
        self.last_valu_w = {}
        self.last_trans_w = {}
        self.last_mfma_w = {}
        self.last_mfma_c = {}
        self.last_valu_sw = {}
        self.m0_w = -100
        self.stats = {}
        self.store_data = {}

    def raw(self, text, states=1):
        self.lines.append("  " + text)
        self.pos += states
    def label(self, name):
        self.lines.append(name + ":")
    def comment(self, text):
        self.lines.append("  ; " + text)

    def _nop_until(self, need_pos):
        gap = need_pos - self.pos
        while gap > 0:
            k = min(gap, 16)
            self.raw(f"s_nop {k-1}", k)
            gap -= k

    def _wait_regs(self, regs):
        regs = set(regs)
        need_l = None
        for idx, d in enumerate(self.lgkm):
            if d & regs:
                need_l = idx
        need_v = None
        for idx, d in enumerate(self.vm):
            if d & regs:
                need_v = idx
        parts = []
        if need_v is not None:
            n = len(self.vm) - need_v - 1
            n = min(n, 63)
            parts.append(f"vmcnt({n})")
            self.vm = self.vm[len(self.vm) - n:] if n > 0 else []
        if need_l is not None:
            n = len(self.lgkm) - need_l - 1
            n = min(n, 15)
            parts.append(f"lgkmcnt({n})")
            self.lgkm = self.lgkm[len(self.lgkm) - n:] if n > 0 else []
        if parts:
            self.raw("s_waitcnt " + " ".join(parts))

    def wait(self, vmcnt=None, lgkmcnt=None):
        parts = []
        if vmcnt is not None:
            parts.append(f"vmcnt({vmcnt})")
            if len(self.vm) > vmcnt:
                self.vm = self.vm[len(self.vm) - vmcnt:] if vmcnt > 0 else []
        if lgkmcnt is not None:
            parts.append(f"lgkmcnt({lgkmcnt})")
            if len(self.lgkm) > lgkmcnt:
                self.lgkm = self.lgkm[len(self.lgkm) - lgkmcnt:] if lgkmcnt > 0 else []
        self.raw("s_waitcnt " + " ".join(parts))

    def ins(self, text, kind, reads=(), writes=(), srcc=(), passes=4):
        reads = list(reads); writes = list(writes); srcc = list(srcc)
        allr = reads + srcc
        self._wait_regs(allr + writes)
        need = self.pos
        if kind == 'mfma':
            for r in allr:
                p = self.last_valu_w.get(r)
                if p is not None: need = max(need, p + 3)
            d0 = writes[0]
            for r in reads:
                e = self.last_mfma_w.get(r)
                if e is not None: need = max(need, e[0] + 1 + (8 if e[2] == 4 else 12))
            for r in srcc:
                e = self.last_mfma_w.get(r)
                if e is not None and e[1] != d0:
                    need = max(need, e[0] + 1 + (6 if e[2] == 4 else 10))
        else:
            if kind in ('valu', 'trans', 'ds_rd', 'ds_wr', 'vm_ld', 'vm_st', 'dma', 'perm'):
                for r in allr + writes:
                    e = self.last_mfma_w.get(r)
                    if e is not None: need = max(need, e[0] + 1 + (8 if e[2] == 4 else 12))
            if kind in ('valu', 'trans', 'ds_rd', 'vm_ld', 'perm'):
                for r in writes:
                    p = self.last_mfma_c.get(r)
                    if p is not None: need = max(need, p + 1 + 3)
                    p = self.store_data.get(r)
                    if p is not None: need = max(need, p + 3)
            if kind in ('valu', 'trans', 'perm'):
                for r in allr:
                    p = self.last_trans_w.get(r)
                    if p is not None: need = max(need, p + 2)
            if kind == 'perm':
                for r in allr:
                    p = self.last_valu_w.get(r)
                    if p is not None: need = max(need, p + 3)
            if kind == 'dma':
                need = max(need, self.m0_w + 2)
        self._nop_until(need)
        p = self.pos
        self.lines.append("  " + text)
        self.pos += 1
        self.stats[kind] = self.stats.get(kind, 0) + 1
        if kind in ('valu', 'trans', 'perm'):
            for r in writes:
                self.last_valu_w[r] = p
                self.last_mfma_w.pop(r, None)
                if kind == 'trans': self.last_trans_w[r] = p
                else: self.last_trans_w.pop(r, None)
        elif kind == 'mfma':
            for r in writes:
                self.last_mfma_w[r] = (p, writes[0], passes)
                self.last_valu_w.pop(r, None); self.last_trans_w.pop(r, None)
            for r in srcc: self.last_mfma_c[r] = p
        elif kind == 'ds_rd':
            self.lgkm.append(set(writes))
            for r in writes:
                self.last_valu_w.pop(r, None); self.last_mfma_w.pop(r, None); self.last_trans_w.pop(r, None)
        elif kind == 'ds_wr':
            self.lgkm.append(set())
        elif kind == 'vm_ld':
            self.vm.append(set(writes))
            for r in writes:
                self.last_valu_w.pop(r, None); self.last_mfma_w.pop(r, None); self.last_trans_w.pop(r, None)
        elif kind in ('vm_st', 'dma'):
            self.vm.append(set())
            if kind == 'vm_st':
                for r in reads: self.store_data[r] = p

    def valu(self, op, dst, *srcs, trans=False):
        rd = []
        for s in srcs:
            if isinstance(s, Reg): rd += s.ids()
        txt = f"{op} {dst}, " + ", ".join(str(s) for s in srcs)
        self.ins(txt, 'trans' if trans else 'valu', reads=rd, writes=dst.ids())

    def valu_txt(self, txt, reads, writes, trans=False):
        self.ins(txt, 'trans' if trans else 'valu', reads=reads, writes=writes)

    def mfma(self, D, A, B, C=None, k16=False):
        op = "v_mfma_f32_16x16x16_bf16" if k16 else "v_mfma_f32_16x16x32_bf16"
        assert D.n == 4 and A.n == B.n == (2 if k16 else 4)
        if C is None:
            self.ins(f"{op} {D}, {A}, {B}, 0", 'mfma', reads=A.ids() + B.ids(), writes=D.ids())
        else:
            self.ins(f"{op} {D}, {A}, {B}, {C}", 'mfma', reads=A.ids() + B.ids(), writes=D.ids(), srcc=C.ids())

    def ds_read(self, dst, addr, off=0, tr=False):
        assert 0 <= off < 65536, off
        if tr:
            assert dst.n == 2
            op = "ds_read_b64_tr_b16"
        else:
            op = {1: "ds_read_b32", 2: "ds_read_b64", 4: "ds_read_b128"}[dst.n]
        self.ins(f"{op} {dst}, {addr} offset:{off}", 'ds_rd', reads=addr.ids(), writes=dst.ids())

    def ds_write(self, addr, src, off=0):
        assert 0 <= off < 65536
        op = {1: "ds_write_b32", 2: "ds_write_b64", 4: "ds_write_b128"}[src.n]
        self.ins(f"{op} {addr}, {src} offset:{off}", 'ds_wr', reads=addr.ids() + src.ids())

    def bpermute(self, dst, addr, src):
        self.ins(f"ds_bpermute_b32 {dst}, {addr}, {src}", 'ds_rd', reads=addr.ids() + src.ids(), writes=dst.ids())

    def buf_load(self, dst, voff, srd, soff="0", off=0):
        assert 0 <= off < 4096
        op = {1: "buffer_load_dword", 2: "buffer_load_dwordx2", 4: "buffer_load_dwordx4"}[dst.n]
        o = f" offset:{off}" if off else ""
        self.ins(f"{op} {dst}, {voff}, {srd}, {soff} offen{o}", 'vm_ld', reads=voff.ids(), writes=dst.ids())

    def buf_store(self, src, voff, srd, soff="0", off=0):
        assert 0 <= off < 4096
        op = {1: "buffer_store_dword", 2: "buffer_store_dwordx2", 4: "buffer_store_dwordx4"}[src.n]
        o = f" offset:{off}" if off else ""
        self.ins(f"{op} {src}, {voff}, {srd}, {soff} offen{o}", 'vm_st', reads=voff.ids() + src.ids())

    def dma(self, voff, srd, soff, flags=""):
        self.ins(f"buffer_load_dwordx4 {voff}, {srd}, {soff} offen {flags} lds".replace("  ", " "), 'dma', reads=voff.ids())

    def set_m0(self, txt):
        self.raw(txt)
        self.m0_w = self.pos - 1

    def salu(self, txt):
        self.raw(txt)

    def barrier(self):
        self.raw("s_barrier")

    def text(self):
        return "\n".join(self.lines) + "\n"
```

```python
from asmlib import *

LOG2E = 1.4426950408889634
import struct
def f32bits(x): return struct.unpack("<I", struct.pack("<f", x))[0]

V = lambda b, n=1: Reg('v', b, n)
A = lambda b, n=1: Reg('a', b, n)

SLOT = 32768
NSLOT = 4
SCR = NSLOT * SLOT
LDS_K2 = SCR + 4096

vTID, vLANE, vG, vI = V(0), V(1), V(2), V(3)
vT = [V(4 + k) for k in range(12)]
vDMA = [V(16 + k) for k in range(8)]
vPh, vPh2, vPh3, vRB512, vRB8192 = V(24), V(25), V(26), V(27), V(28)
vBP16, vBP32 = V(29), V(30)
vM = [V(31 + p) for p in range(3)]
vL = [V(34 + p) for p in range(3)]
vMC = [V(37 + p) for p in range(3)]
ADDR0 = 40
SBASE = 72
STBASE = 216
SMT = 240
QACC = 64
XF0 = 0
QF0 = 0
OACC0 = 0
FR0 = 192; NFR = 16

sW, sWL, sC, sTMP = "s28", "s29", "s30", "s31"
SRD_K, SRD_V, SRD_W, SRD_X, SRD_O = "s[8:11]", "s[12:15]", "s[16:19]", "s[20:23]", "s[24:27]"

def accQ(p, sp, u): return V(QACC + ((p * 8 + sp) * 2 + u) * 4, 4)
def xf(p, K): return A(XF0 + (K * 3 + p) * 4, 4)
def qf(p, s): return A(QF0 + (p * 8 + s) * 4, 4)
def oacc(p, t): return A(OACC0 + (p * 16 + t) * 4, 4)
def sreg(p, c, kt):
    return V(SBASE + ((p * 8 + c) * 4 + kt) * 2, 2)
def sregX(c): return V(SBASE + 128 + c * 2, 2)
def preg(p, c, ks): return V(SBASE + ((p * 8 + c) * 4 + 2 * ks) * 2, 4)

class K2:
    def __init__(self, name="attn_kernel", lookahead=6, fill_rate=2):
        self.a = Asm(); self.name = name
        self.fr_next = 0
        self.fillers = []
        self.lookahead = lookahead
        self.fill_rate = fill_rate

    def newfrag(self):
        f = A(FR0 + 4 * self.fr_next, 4); self.fr_next = (self.fr_next + 1) % NFR
        return f

    def prologue(self):
        a = self.a
        a.salu("s_cmp_ge_u32 s2, 256")
        a.salu("s_cbranch_scc1 L_k2_end")
        a.salu("s_load_dwordx2 s[40:41], s[0:1], 96")
        a.salu("s_lshr_b32 s4, s2, 7")
        a.salu("s_mul_i32 s5, s4, 40")
        a.salu("s_add_u32 s0, s0, s5")
        a.salu("s_addc_u32 s1, s1, 0")
        a.salu("s_load_dwordx8 s[32:39], s[0:1], 0")
        a.salu("s_and_b32 s6, s2, 15")
        a.salu("s_lshr_b32 s7, s2, 4")
        a.salu("s_and_b32 s7, s7, 7")
        a.valu("v_and_b32", vLANE, "63", vTID)
        a.valu("v_lshrrev_b32", vT[0], "6", vTID)
        a.raw("s_nop 1", 2)
        a.raw(f"v_readfirstlane_b32 {sW}, {vT[0]}")
        a.valu("v_lshrrev_b32", vG, "4", vLANE)
        a.valu("v_and_b32", vI, "15", vLANE)
        a.raw("s_nop 3", 4)
        a.salu(f"s_lshl_b32 {sWL}, {sW}, 13")
        a.salu(f"s_mov_b32 {sC}, 0x{f32bits(LOG2E/16.0):08x}")
        a.salu("s_waitcnt lgkmcnt(0)")
        a.salu("s_lshl_b32 s5, s7, 4")
        a.salu("s_add_u32 s5, s5, s6")
        a.salu("s_lshl_b32 s5, s5, 18")
        a.salu("s_add_u32 s8, s34, s5"); a.salu("s_addc_u32 s9, s35, 0"); a.salu("s_and_b32 s9, s9, 0xffff")
        a.salu("s_mov_b32 s10, 262144"); a.salu("s_mov_b32 s11, 0x00020000")
        a.salu("s_add_u32 s12, s36, s5"); a.salu("s_addc_u32 s13, s37, 0"); a.salu("s_and_b32 s13, s13, 0xffff")
        a.salu("s_mov_b32 s14, 262144"); a.salu("s_mov_b32 s15, 0x00020000")
        a.salu("s_lshl_b32 s5, s6, 9")
        a.salu("s_add_u32 s16, s38, s5"); a.salu("s_addc_u32 s17, s39, 0"); a.salu("s_and_b32 s17, s17, 0xffff")
        a.salu("s_sub_u32 s18, 3670016, s5"); a.salu("s_mov_b32 s19, 0x00020000")
        a.salu("s_mul_i32 s5, s7, 129024")
        a.salu("s_add_u32 s20, s32, s5"); a.salu("s_addc_u32 s21, s33, 0"); a.salu("s_and_b32 s21, s21, 0xffff")
        a.salu("s_mov_b32 s22, 129024"); a.salu("s_mov_b32 s23, 0x00020000")
        a.salu("s_mul_i32 s5, s4, 9437184")
        a.salu("s_add_u32 s24, s40, s5"); a.salu("s_addc_u32 s25, s41, 0"); a.salu("s_and_b32 s25, s25, 0xffff")
        a.salu("s_mov_b32 s26, 9437184"); a.salu("s_mov_b32 s27, 0x00020000")
        for p in range(3):
            if p < 2:
                a.salu(f"s_lshl_b32 s5, {sW}, 5")
                a.salu(f"s_add_u32 s5, s5, {16*p}")
                a.valu("v_add_u32", vT[1], "s5", vI)
            else:
                a.valu("v_add_u32", vT[1], "128", vI)
            a.salu("s_movk_i32 s5, 896")
            a.valu("v_mul_lo_u32", vT[1], vT[1], "s5")
            a.valu("v_lshl_add_u32", vT[2 + p], vG, "4", vT[1])
        for K in range(14):
            for p in range(3):
                a.buf_load(xf(p, K), vT[2 + p], SRD_X, off=64 * K)
        a.valu("v_lshrrev_b32", vT[5], "5", vLANE)
        a.valu("v_and_b32", vT[6], "31", vLANE)
        a.valu("v_xor_b32", vPh, vT[6], vT[5])
        a.valu("v_lshlrev_b32", vT[7], "1", vT[5]); a.valu("v_xor_b32", vPh2, vT[6], vT[7])
        a.valu("v_lshlrev_b32", vT[7], "2", vT[5]); a.valu("v_xor_b32", vPh3, vT[6], vT[7])
        a.salu(f"s_lshl_b32 s5, {sW}, 4")
        a.valu("v_add_u32", vT[7], "s5", vT[5])
        a.valu("v_lshlrev_b32", vRB512, "9", vT[7])
        a.valu("v_lshlrev_b32", vRB8192, "13", vT[7])
        a.valu("v_xor_b32", vT[7], "16", vLANE); a.valu("v_lshlrev_b32", vBP16, "2", vT[7])
        a.valu("v_xor_b32", vT[7], "32", vLANE); a.valu("v_lshlrev_b32", vBP32, "2", vT[7])

    def dma_offsets(self, kind):
        a = self.a
        for n in range(8):
            if kind == 'K':
                a.valu("v_xor_b32", vT[8], str(2 * n), vPh); base, stride = vRB512, 512
            elif kind == 'V':
                a.valu("v_xor_b32", vT[8], str(((2 * n) & 7) << 1), vPh2); base, stride = vRB512, 512
            else:
                a.valu("v_xor_b32", vT[8], str(((2 * n) & 3) << 2), vPh3); base, stride = vRB8192, 8192
            a.valu("v_lshl_add_u32", vT[8], vT[8], "4", base)
            a.valu("v_add_u32", vDMA[n], str(2 * n * stride), vT[8])

    def issue_dma(self, it):
        a = self.a
        if it < 7: kind, srd, soff = 'W', SRD_W, it * 64 * 8192
        elif it < 15: kind, srd, soff = 'K', SRD_K, (it - 7) * SLOT
        else: kind, srd, soff = 'V', SRD_V, (it - 15) * SLOT
        if it in (0, 7, 15): self.dma_offsets(kind)
        a.salu(f"s_mov_b32 {sTMP}, {soff}")
        slot = (it % NSLOT) * SLOT
        for n in range(8):
            a.set_m0(f"s_add_u32 m0, {sWL}, {slot + n * 1024}")
            a.dma(vDMA[n], srd, sTMP, None)

    def addr_W(self):
        a = self.a
        a.valu("v_lshrrev_b32", vT[0], "2", vI)
        a.valu("v_and_b32", vT[1], "3", vI)
        a.valu("v_lshl_add_u32", vT[2], vG, "3", vT[0])
        a.valu("v_lshlrev_b32", vT[2], "9", vT[2])
        for v in range(4):
            a.valu("v_xor_b32", vT[3], str(v), vT[0])
            a.valu("v_lshl_add_u32", vT[3], vT[3], "2", vT[1])
            a.valu("v_lshl_add_u32", V(ADDR0 + v * 2), vT[3], "4", vT[2])
            a.valu("v_add_u32", V(ADDR0 + v * 2 + 1), "0x10000", V(ADDR0 + v * 2))
    def aW(self, v, half): return V(ADDR0 + v * 2 + half)

    def addr_K(self):
        a = self.a
        a.valu("v_lshlrev_b32", vT[2], "9", vI)
        a.salu(f"s_lshl_b32 s5, {sW}, 13")
        for v in range(4):
            a.valu("v_add_u32", vT[3], str(4 * v), vG)
            a.valu("v_xor_b32", vT[3], vT[3], vI)
            a.valu("v_lshl_add_u32", V(ADDR0 + v * 2), vT[3], "4", vT[2])
            a.valu("v_add_u32", V(ADDR0 + v * 2 + 1), "0x10000", V(ADDR0 + v * 2))
            a.valu("v_add_u32", V(ADDR0 + 8 + v * 2), "s5", V(ADDR0 + v * 2))
            a.valu("v_add_u32", V(ADDR0 + 8 + v * 2 + 1), "s5", V(ADDR0 + v * 2 + 1))
    def aK(self, v, half, x=False): return V(ADDR0 + (8 if x else 0) + v * 2 + half)

    def addr_V(self):
        a = self.a
        a.valu("v_lshrrev_b32", vT[0], "2", vI)
        a.valu("v_and_b32", vT[1], "3", vI)
        a.valu("v_lshl_add_u32", vT[2], vG, "2", vT[0])
        a.valu("v_and_b32", vT[4], "7", vT[2])
        a.valu("v_lshlrev_b32", vT[2], "9", vT[2])
        a.valu("v_and_b32", vT[5], "1", vT[1])
        a.valu("v_lshl_add_u32", vT[2], vT[5], "3", vT[2])
        a.valu("v_lshrrev_b32", vT[5], "1", vT[1])
        a.salu(f"s_lshl_b32 s5, {sW}, 13")
        for v in range(8):
            a.valu("v_xor_b32", vT[3], str(v), vT[4])
            a.valu("v_lshl_add_u32", vT[3], vT[3], "1", vT[5])
            a.valu("v_lshl_add_u32", V(ADDR0 + v * 2), vT[3], "4", vT[2])
            a.valu("v_add_u32", V(ADDR0 + v * 2 + 1), "0x10000", V(ADDR0 + v * 2))
            a.valu("v_add_u32", V(ADDR0 + 16 + v * 2), "s5", V(ADDR0 + v * 2))
            a.valu("v_add_u32", V(ADDR0 + 16 + v * 2 + 1), "s5", V(ADDR0 + v * 2 + 1))
    def aV(self, v, half, x=False): return V(ADDR0 + (16 if x else 0) + v * 2 + half)

    def run_jobs(self, jobs):
        a = self.a
        issued = 0
        n = len(jobs)
        for j in range(n):
            while issued < min(n, j + 1 + self.lookahead):
                for (dst, addr, off, tr) in jobs[issued][0]:
                    a.ds_read(dst, addr, off, tr)
                issued += 1
            for (D, Aop, Bop, C, k16) in jobs[j][1]:
                a.mfma(D, Aop, Bop, C, k16)
                self.pop_fillers(self.fill_rate)
        return

    def pop_fillers(self, k):
        for _ in range(k):
            if not self.fillers: return
            self.fillers.pop(0)()
    def drain_fillers(self):
        while self.fillers: self.fillers.pop(0)()

    def qproj(self, it):
        slot = it % NSLOT; half = slot >> 1; so = (slot & 1) * SLOT
        jobs = []
        for ks in range(2):
            K = 2 * it + ks
            for sp in range(8):
                for u in range(2):
                    f = self.newfrag()
                    rd = [(f.sub(2 * j, 2), self.aW(sp & 3, half), so + (32 * ks + 4 * j) * 512 + (sp >> 2) * 256 + 8 * u, True) for j in range(2)]
                    mm = [(accQ(p, sp, u), f, xf(p, K), None if K == 0 else accQ(p, sp, u), False) for p in range(3)]
                    jobs.append((rd, mm))
        self.run_jobs(jobs)

    def pack_q(self):
        a = self.a
        for p in range(3):
            for sp in range(8):
                q = qf(p, sp)
                for u in range(2):
                    ac = accQ(p, sp, u)
                    for hh in range(2):
                        t = V(SMT + (u * 2 + hh) % 4) if False else vT[8 + (u * 2 + hh) % 4]
                        a.valu("v_cvt_pk_bf16_f32", t, ac.sub(2 * hh), ac.sub(2 * hh + 1))
                        a.ins(f"v_accvgpr_write_b32 {q.sub(u*2+hh)}, {t}", 'valu', reads=t.ids(), writes=q.sub(u * 2 + hh).ids())

    def qk(self, it):
        c = it - 7
        slot = it % NSLOT; half = slot >> 1; so = (slot & 1) * SLOT
        a = self.a
        for kt in range(5):
            jobs = []
            for s in range(8):
                f = self.newfrag()
                if kt < 4:
                    rd = [(f, self.aK(s & 3, half), so + kt * 8192 + (s >> 2) * 256, False)]
                    mm = [(V(STBASE + ((kt & 1) * 2 + p) * 4, 4), f, qf(p, s), None if s == 0 else V(STBASE + ((kt & 1) * 2 + p) * 4, 4), False) for p in range(2)]
                else:
                    rd = [(f, self.aK(s & 3, half, True), so + (s >> 2) * 256, False)]
                    mm = [(V(STBASE + 16, 4), f, qf(2, s), None if s == 0 else V(STBASE + 16, 4), False)]
                jobs.append((rd, mm))
            self.run_jobs(jobs)
            tiles = [(V(STBASE + ((kt & 1) * 2 + p) * 4, 4), p, sreg(p, c, kt)) for p in range(2)] if kt < 4 else [(V(STBASE + 16, 4), 2, sregX(c))]
            for (st, p, dst) in tiles:
                first = (c == 0 and (kt == 0 or kt == 4))
                def mk(st=st, p=p, dst=dst, first=first):
                    return [
                        (lambda: a.valu("v_max_f32", vM[p], st.sub(0), st.sub(1))) if first else (lambda: a.valu("v_max3_f32", vM[p], vM[p], st.sub(0), st.sub(1))),
                        lambda: a.valu("v_max3_f32", vM[p], vM[p], st.sub(2), st.sub(3)),
                        lambda: a.valu("v_cvt_pk_bf16_f32", dst.sub(0), st.sub(0), st.sub(1)),
                        lambda: a.valu("v_cvt_pk_bf16_f32", dst.sub(1), st.sub(2), st.sub(3)),
                    ]
                self.fillers += mk()

    def xlane(self, op, reg):
        a = self.a
        a.bpermute(vT[0], vBP16, reg); a.valu(op, reg, reg, vT[0])
        a.bpermute(vT[0], vBP32, reg); a.valu(op, reg, reg, vT[0])

    def softmax_ops(self, c):
        a = self.a
        ops = []
        regs = [(preg(p, c, ks).sub(k), p) for p in range(2) for ks in range(2) for k in range(4)] + [(sregX(c).sub(k), 2) for k in range(2)]
        for n, (s, p) in enumerate(regs):
            t0, t1 = V(SMT + (n % 4) * 4), V(SMT + (n % 4) * 4 + 1)
            e0, e1 = V(SMT + (n % 4) * 4 + 2), V(SMT + (n % 4) * 4 + 3)
            ops += [
                lambda s=s, t0=t0: a.valu("v_lshlrev_b32", t0, "16", s),
                lambda s=s, t1=t1: a.valu("v_and_b32", t1, "0xffff0000", s),
                lambda p=p, t0=t0: a.valu_txt(f"v_fma_f32 {t0}, {t0}, {sC}, -{vMC[p]}", t0.ids() + vMC[p].ids(), t0.ids()),
                lambda p=p, t1=t1: a.valu_txt(f"v_fma_f32 {t1}, {t1}, {sC}, -{vMC[p]}", t1.ids() + vMC[p].ids(), t1.ids()),
                lambda t0=t0, e0=e0: a.valu("v_exp_f32", e0, t0, trans=True),
                lambda t1=t1, e1=e1: a.valu("v_exp_f32", e1, t1, trans=True),
                lambda p=p, e0=e0: a.valu("v_add_f32", vL[p], vL[p], e0),
                lambda p=p, e1=e1: a.valu("v_add_f32", vL[p], vL[p], e1),
                lambda s=s, e0=e0, e1=e1: a.valu("v_cvt_pk_bf16_f32", s, e0, e1),
            ]
        return ops

    def pv(self, it):
        c = it - 15
        slot = it % NSLOT; half = slot >> 1; so = (slot & 1) * SLOT
        jobs = []
        for ks in range(2):
            for t in range(16):
                f = self.newfrag()
                rd = [(f.sub(2 * j, 2), self.aV(t & 7, half), so + (32 * ks + 16 * j) * 512 + (t >> 3) * 256, True) for j in range(2)]
                first = (c == 0 and ks == 0)
                mm = [(oacc(p, t), f, preg(p, c, ks), None if first else oacc(p, t), False) for p in range(2)]
                jobs.append((rd, mm))
        for t in range(16):
            f = self.newfrag()
            rd = [(f.sub(0, 2), self.aV(t & 7, half, True), so + (t >> 3) * 256, True)]
            mm = [(oacc(2, t), f.sub(0, 2), sregX(c), None if c == 0 else oacc(2, t), True)]
            jobs.append((rd, mm))
        self.run_jobs(jobs)

    def epilogue(self):
        a = self.a
        for p in range(3): self.xlane("v_add_f32", vL[p])
        for p in range(2): a.valu("v_rcp_f32", vL[p], vL[p], trans=True)
        a.salu("s_mul_i32 s5, s7, 144")
        a.salu(f"s_lshl_b32 s3, {sW}, 5")
        a.salu("s_add_u32 s3, s3, s5")
        a.salu("s_lshl_b32 s4, s6, 9")
        for p in range(2):
            a.valu("v_add_u32", vT[1], "s3", vI)
            if p: a.valu("v_add_u32", vT[1], "16", vT[1])
            a.valu("v_lshlrev_b32", vT[1], "13", vT[1])
            a.valu("v_lshl_add_u32", vT[1], vG, "3", vT[1])
            a.valu("v_add_u32", vT[2 + p], "s4", vT[1])
        for p in range(2):
            for t in range(16):
                o = oacc(p, t); base = SMT + (t % 2) * 6
                for r in range(4):
                    a.ins(f"v_accvgpr_read_b32 {V(base+r)}, {o.sub(r)}", 'valu', reads=o.sub(r).ids(), writes=V(base + r).ids())
                for r in range(4):
                    a.valu("v_mul_f32", V(base + r), V(base + r), vL[p])
                a.valu("v_cvt_pk_bf16_f32", V(base + 4), V(base), V(base + 1))
                a.valu("v_cvt_pk_bf16_f32", V(base + 5), V(base + 2), V(base + 3))
                a.buf_store(V(base + 4, 2), vT[2 + p], SRD_O, off=32 * t)
        a.barrier()
        a.valu("v_lshlrev_b32", vT[1], "4", vLANE)
        a.salu(f"s_lshl_b32 s3, {sW}, 14")
        a.valu("v_add_u32", vT[1], "s3", vT[1])
        for t in range(16):
            o = oacc(2, t); base = SMT + (t % 3) * 4
            for r in range(4):
                a.ins(f"v_accvgpr_read_b32 {V(base+r)}, {o.sub(r)}", 'valu', reads=o.sub(r).ids(), writes=V(base + r).ids())
            a.ds_write(vT[1], V(base, 4), off=t * 1024)
        a.valu("v_lshlrev_b32", vT[4], "2", vLANE)
        a.valu("v_add_u32", vT[4], str(SCR), vT[4])
        a.salu(f"s_lshl_b32 s3, {sW}, 8")
        a.valu("v_add_u32", vT[5], "s3", vT[4])
        a.ds_write(vT[5], vL[2], off=1024)
        a.wait(lgkmcnt=0)
        a.barrier()
        a.valu("v_lshlrev_b32", vT[1], "4", vLANE)
        a.salu(f"s_lshl_b32 s3, {sW}, 12")
        a.valu("v_add_u32", vT[1], "s3", vT[1])
        for ww in range(4):
            a.ds_read(V(SMT + ww), vT[4], off=1024 + ww * 256)
        a.valu("v_add_f32", V(SMT), V(SMT), V(SMT + 1)); a.valu("v_add_f32", V(SMT + 2), V(SMT + 2), V(SMT + 3))
        a.valu("v_add_f32", V(SMT), V(SMT), V(SMT + 2))
        a.valu("v_rcp_f32", vT[6], V(SMT), trans=True)
        a.salu("s_mul_i32 s5, s7, 144")
        a.salu("s_add_u32 s5, s5, 128")
        a.valu("v_add_u32", vT[7], "s5", vI)
        a.valu("v_lshlrev_b32", vT[7], "13", vT[7])
        a.valu("v_lshl_add_u32", vT[7], vG, "3", vT[7])
        a.salu("s_lshl_b32 s4, s6, 9"); a.salu(f"s_lshl_b32 s3, {sW}, 7"); a.salu("s_add_u32 s4, s4, s3")
        a.valu("v_add_u32", vT[7], "s4", vT[7])
        for tt in range(4):
            bb = SBASE + tt * 16
            for ww in range(4):
                a.ds_read(V(bb + 4 * ww, 4), vT[1], off=ww * 16384 + tt * 1024)
        for tt in range(4):
            bb = SBASE + tt * 16
            for r in range(4):
                a.valu("v_add_f32", V(bb + r), V(bb + r), V(bb + 4 + r))
                a.valu("v_add_f32", V(bb + 8 + r), V(bb + 8 + r), V(bb + 12 + r))
                a.valu("v_add_f32", V(bb + r), V(bb + r), V(bb + 8 + r))
                a.valu("v_mul_f32", V(bb + r), V(bb + r), vT[6])
            a.valu("v_cvt_pk_bf16_f32", V(bb + 4), V(bb), V(bb + 1))
            a.valu("v_cvt_pk_bf16_f32", V(bb + 5), V(bb + 2), V(bb + 3))
            a.buf_store(V(bb + 4, 2), vT[7], SRD_O, off=32 * tt)

    def build(self):
        a = self.a
        self.prologue()
        for it in range(3): self.issue_dma(it)
        self.addr_W()
        NIT = 23
        for it in range(NIT):
            ahead = min(it + 2, NIT - 1) - it
            a.wait(vmcnt=8 * ahead)
            if it == 15:
                pass
            a.barrier()
            if it + 3 < NIT: self.issue_dma(it + 3)
            if it < 7:
                self.qproj(it)
                if it == 6:
                    self.pack_q(); self.addr_K()
            elif it < 15:
                self.qk(it)
                if it == 14:
                    self.drain_fillers()
                    for p in range(3): self.xlane("v_max_f32", vM[p])
                    a.valu("v_lshlrev_b32", vT[4], "2", vLANE)
                    a.valu("v_add_u32", vT[4], str(SCR), vT[4])
                    a.salu(f"s_lshl_b32 s3, {sW}, 8")
                    a.valu("v_add_u32", vT[5], "s3", vT[4])
                    a.ds_write(vT[5], vM[2], off=0)
                    a.wait(lgkmcnt=0)
                    self.addr_V()
            else:
                if it == 15:
                    a.valu("v_lshlrev_b32", vT[4], "2", vLANE)
                    a.valu("v_add_u32", vT[4], str(SCR), vT[4])
                    for ww in range(4): a.ds_read(V(SMT + ww), vT[4], off=ww * 256)
                    a.valu("v_max_f32", V(SMT), V(SMT), V(SMT + 1)); a.valu("v_max_f32", V(SMT + 2), V(SMT + 2), V(SMT + 3))
                    a.valu("v_max_f32", vM[2], V(SMT), V(SMT + 2))
                    for p in range(3):
                        a.valu("v_mul_f32", vMC[p], sC, vM[p])
                        a.valu("v_mov_b32", vL[p], "0")
                    self.fillers += self.softmax_ops(0); self.drain_fillers()
                if it + 1 < NIT: self.fillers += self.softmax_ops(it + 1 - 15)
                self.pv(it)
                self.drain_fillers()
        self.epilogue()
        return a
```

```python
from asmlib import *
V = lambda b, n=1: Reg('v', b, n)

NST = 4
STG = 16384
LDS_K3 = NST * STG

vTID, vLANE, vG, vI = V(0), V(1), V(2), V(3)
vT = [V(4 + k) for k in range(10)]
vDO = [V(14), V(15)]
vDW = [V(16), V(17)]
vAW = [V(18), V(19)]
vAO = [V(20), V(21)]
vOFF = V(22)
ACC = 24
FRA = 40
FRB = 56
NVGPR = 72

sW = "s28"
SRD_O, SRD_W, SRD_OUT = "s[8:11]", "s[12:15]", "s[16:19]"
sKO, sKW, sCNT, sWL = "s20", "s21", "s22", "s23"

class K3:
    def __init__(self):
        self.a = Asm()

    def build(self):
        a = self.a
        a.salu("s_cmp_ge_u32 s2, 252")
        a.salu("s_cbranch_scc1 L_k3_end")
        a.salu("s_load_dwordx2 s[40:41], s[0:1], 96")
        a.salu("s_load_dwordx2 s[42:43], s[0:1], 80")
        a.salu("s_cmp_ge_u32 s2, 126")
        a.salu("s_cselect_b32 s4, 1, 0")
        a.salu("s_mul_i32 s5, s4, 126")
        a.salu("s_sub_u32 s5, s2, s5")
        a.salu("s_mul_hi_u32 s6, s5, 613566757")
        a.salu("s_mul_i32 s7, s6, 7")
        a.salu("s_sub_u32 s7, s5, s7")
        a.salu("s_mul_i32 s3, s4, 40")
        a.salu("s_add_u32 s3, s3, 32")
        a.salu("s_load_dwordx2 s[44:45], s[0:1], s3")
        a.valu("v_and_b32", vLANE, "63", vTID)
        a.valu("v_lshrrev_b32", vT[0], "6", vTID)
        a.raw("s_nop 1", 2)
        a.raw(f"v_readfirstlane_b32 {sW}, {vT[0]}")
        a.valu("v_lshrrev_b32", vG, "4", vLANE)
        a.valu("v_and_b32", vI, "15", vLANE)
        a.raw("s_nop 3", 4)
        a.salu(f"s_lshl_b32 {sWL}, {sW}, 11")
        a.salu("s_waitcnt lgkmcnt(0)")
        a.salu("s_mul_i32 s3, s4, 9437184")
        a.salu("s_lshl_b32 s5, s6, 19")
        a.salu("s_add_u32 s3, s3, s5")
        a.salu("s_add_u32 s8, s40, s3"); a.salu("s_addc_u32 s9, s41, 0"); a.salu("s_and_b32 s9, s9, 0xffff")
        a.salu("s_mov_b32 s10, 524288"); a.salu("s_mov_b32 s11, 0x00020000")
        a.salu("s_lshl_b32 s3, s7, 7")
        a.salu("s_add_u32 s12, s44, s3"); a.salu("s_addc_u32 s13, s45, 0"); a.salu("s_and_b32 s13, s13, 0xffff")
        a.salu("s_sub_u32 s14, 3670016, s3"); a.salu("s_mov_b32 s15, 0x00020000")
        a.salu("s_mov_b32 s16, s42"); a.salu("s_and_b32 s17, s43, 0xffff")
        a.salu("s_mov_b32 s18, 2064384"); a.salu("s_mov_b32 s19, 0x00020000")
        a.valu("v_lshrrev_b32", vT[0], "3", vLANE)
        a.valu("v_lshrrev_b32", vT[1], "4", vLANE)
        a.valu("v_and_b32", vT[2], "7", vLANE)
        a.salu(f"s_lshl_b32 s3, {sW}, 4")
        for n in range(2):
            a.valu("v_add_u32", vT[3], "s3", vT[0])
            if n: a.valu("v_add_u32", vT[3], "8", vT[3])
            a.valu("v_add_u32", vT[4], str(4 * n), vT[1])
            a.valu("v_xor_b32", vT[4], vT[4], vT[2])
            a.valu("v_lshlrev_b32", vT[5], "13", vT[3])
            a.valu("v_lshl_add_u32", vDO[n], vT[4], "4", vT[5])
            a.valu("v_and_b32", vT[4], "1", vT[1])
            if n: a.valu("v_or_b32", vT[4], "2", vT[4])
            a.valu("v_lshrrev_b32", vT[5], "1", vT[2])
            a.valu("v_xor_b32", vT[4], vT[4], vT[5])
            a.valu("v_and_b32", vT[5], "1", vT[2])
            a.valu("v_lshl_add_u32", vT[4], vT[4], "1", vT[5])
            a.salu("s_movk_i32 s5, 896")
            a.valu("v_mul_lo_u32", vT[5], vT[3], "s5")
            a.valu("v_lshl_add_u32", vDW[n], vT[4], "4", vT[5])
        a.valu("v_lshrrev_b32", vT[0], "2", vI)
        a.valu("v_and_b32", vT[1], "3", vI)
        a.valu("v_lshl_add_u32", vT[2], vG, "3", vT[0])
        a.valu("v_lshlrev_b32", vT[2], "7", vT[2])
        a.valu("v_lshrrev_b32", vT[3], "1", vT[1]); a.valu("v_lshl_add_u32", vT[2], vT[3], "4", vT[2])
        a.valu("v_and_b32", vT[3], "1", vT[1]); a.valu("v_lshl_add_u32", vT[2], vT[3], "3", vT[2])
        a.valu("v_add_u32", vT[2], "8192", vT[2])
        a.valu("v_lshrrev_b32", vT[3], "1", vT[0]); a.valu("v_and_b32", vT[3], "1", vT[3])
        a.valu("v_and_b32", vT[4], "1", vG); a.valu("v_lshl_or_b32", vT[3], vT[4], "1", vT[3])
        a.salu(f"s_and_b32 s3, {sW}, 1"); a.salu("s_lshl_b32 s3, s3, 1")
        for ntp in range(2):
            a.valu("v_xor_b32", vT[4], "s3", vT[3])
            if ntp: a.valu("v_xor_b32", vT[4], "1", vT[4])
            a.valu("v_lshl_add_u32", vAW[ntp], vT[4], "5", vT[2])
        a.salu(f"s_lshr_b32 s3, {sW}, 1"); a.salu("s_lshl_b32 s3, s3, 5")
        a.valu("v_add_u32", vT[2], "s3", vI); a.valu("v_lshlrev_b32", vT[2], "7", vT[2])
        a.valu("v_lshrrev_b32", vT[3], "1", vI); a.valu("v_and_b32", vT[3], "7", vT[3])
        for ks in range(2):
            a.valu("v_add_u32", vT[4], str(4 * ks), vG)
            a.valu("v_xor_b32", vT[4], vT[4], vT[3])
            a.valu("v_lshl_add_u32", vAO[ks], vT[4], "4", vT[2])
        for r in range(16): a.valu("v_mov_b32", V(ACC + r), "0")
        a.salu(f"s_mov_b32 {sKO}, 0"); a.salu(f"s_mov_b32 {sKW}, 0")
        for st in range(NST - 1): self.dma(st)
        a.salu(f"s_mov_b32 {sCNT}, 0")
        a.raw("s_nop 7", 8)
        a.label("L_k3_loop")
        for st in range(NST):
            a.wait(vmcnt=4 * (NST - 2))
            a.barrier()
            self.dma((st + NST - 1) % NST)
            self.compute(st)
        a.salu(f"s_add_u32 {sCNT}, {sCNT}, 1")
        a.salu(f"s_cmp_lt_u32 {sCNT}, {64 // NST}")
        a.raw("s_nop 7", 8)
        a.salu("s_cbranch_scc1 L_k3_loop")
        a.raw("s_nop 7", 8)
        a.salu(f"s_lshr_b32 s3, {sW}, 1"); a.salu("s_lshl_b32 s3, s3, 5"); a.salu("s_lshl_b32 s5, s6, 6"); a.salu("s_add_u32 s3, s3, s5")
        a.valu("v_add_u32", vT[0], "s3", vI)
        a.salu("s_movk_i32 s5, 1792")
        a.valu("v_mul_lo_u32", vT[0], vT[0], "s5")
        a.salu("s_mul_i32 s3, s4, 896"); a.salu("s_lshl_b32 s5, s7, 7"); a.salu("s_add_u32 s3, s3, s5")
        a.salu(f"s_and_b32 s5, {sW}, 1"); a.salu("s_lshl_b32 s5, s5, 6"); a.salu("s_add_u32 s3, s3, s5")
        a.valu("v_add_u32", vT[0], "s3", vT[0])
        a.valu("v_lshl_add_u32", vOFF, vG, "3", vT[0])
        a.valu("v_add_u32", V(23), str(16 * 1792), vOFF)
        for ntp in range(2):
            for mtp in range(2):
                d = V(ACC + (ntp * 2 + mtp) * 4, 4)
                t = V(FRA + (ntp * 2 + mtp) * 2, 2)
                a.valu("v_cvt_pk_bf16_f32", t.sub(0), d.sub(0), d.sub(1))
                a.valu("v_cvt_pk_bf16_f32", t.sub(1), d.sub(2), d.sub(3))
                a.buf_store(t, V(22 + mtp), SRD_OUT, off=ntp * 32)
        return a

    def dma(self, st):
        a = self.a
        for n in range(2):
            a.set_m0(f"s_add_u32 m0, {sWL}, {st * STG + n * 1024}")
            a.dma(vDO[n], SRD_O, sKO, None)
        for n in range(2):
            a.set_m0(f"s_add_u32 m0, {sWL}, {st * STG + 8192 + n * 1024}")
            a.dma(vDW[n], SRD_W, sKW, None)
        a.salu(f"s_add_u32 {sKO}, {sKO}, 128")
        a.salu(f"s_add_u32 {sKW}, {sKW}, 57344")

    def compute(self, st):
        a = self.a
        base = st * STG
        for ks in range(2):
            for ntp in range(2):
                f = V(FRA + (ks * 2 + ntp) * 4, 4)
                for j in range(2):
                    a.ds_read(f.sub(2 * j, 2), vAW[ntp], base + (32 * ks + 4 * j) * 128, tr=True)
            for mtp in range(2):
                a.ds_read(V(FRB + (ks * 2 + mtp) * 4, 4), vAO[ks], base + mtp * 2048)
        for ks in range(2):
            for ntp in range(2):
                for mtp in range(2):
                    d = V(ACC + (ntp * 2 + mtp) * 4, 4)
                    a.mfma(d, V(FRA + (ks * 2 + ntp) * 4, 4), V(FRB + (ks * 2 + mtp) * 4, 4), d)
```

```python
import sys
from k2 import K2, LDS_K2
from k3 import K3, LDS_K3, NVGPR as K3V

NAME = "concat_heads__mha_block_cached__mha_block_cached__near_ridge"

def kernel_text(name, body, endlabel):
    return f""".globl {name}
.p2align 8
.type {name},@function
{name}:
{body}{endlabel}:
  s_endpgm
"""

def descriptor(name, vgpr=512, sgpr=102, accum=256):
    return f""".amdhsa_kernel {name}
  .amdhsa_next_free_vgpr {vgpr}
  .amdhsa_next_free_sgpr {sgpr}
  .amdhsa_accum_offset {accum}
  .amdhsa_group_segment_fixed_size 0
  .amdhsa_kernarg_size 104
  .amdhsa_user_sgpr_count 2
  .amdhsa_user_sgpr_kernarg_segment_ptr 1
  .amdhsa_system_sgpr_workgroup_id_x 1
.end_amdhsa_kernel
"""

def metadata(kernels):
    out = "\n.amdgpu_metadata\n---\namdhsa.version: [1, 2]\namdhsa.kernels:\n"
    for (n, vg) in kernels:
        out += f"""  - .name: {n}
    .symbol: {n}.kd
    .kernarg_segment_size: 104
    .kernarg_segment_align: 8
    .group_segment_fixed_size: 0
    .private_segment_fixed_size: 0
    .wavefront_size: 64
    .sgpr_count: 102
    .vgpr_count: {vg}
    .max_flat_workgroup_size: 256
    .args:
      - {{.name: kernargs, .size: 104, .offset: 0, .value_kind: by_value}}
"""
    return out + "...\n.end_amdgpu_metadata\n"

if __name__ == "__main__":
    import os
    a2 = K2(stamps=bool(os.environ.get("STAMPS"))).build()
    a3 = K3().build()
    hdr = (f"; @launch kernel=attn_kernel grid=(256,1,1) block=(256,1,1) lds={LDS_K2}\n"
           f"; @launch kernel=oproj_kernel grid=(256,1,1) block=(256,1,1) lds={LDS_K3}\n")
    txt = '.amdgcn_target "amdgcn-amd-amdhsa--gfx950"\n.text\n'
    txt += kernel_text("attn_kernel", a2.text(), "L_k2_end")
    txt += kernel_text("oproj_kernel", a3.text(), "L_k3_end")
    txt += '.section .rodata,"a"\n.p2align 6\n' + descriptor("attn_kernel") + ".p2align 6\n" + descriptor("oproj_kernel", K3V, 48, K3V)
    open("full.s", "w").write(hdr + txt)
    open("full_test.s", "w").write(txt + metadata([("attn_kernel", 512), ("oproj_kernel", K3V)]))
    print(a2.stats, len(a2.lines)); print(a3.stats, len(a3.lines))
```

```python
from asmlib import *

LOG2E = 1.4426950408889634
import struct
def f32bits(x): return struct.unpack("<I", struct.pack("<f", x))[0]

V = lambda b, n=1: Reg('v', b, n)
A = lambda b, n=1: Reg('a', b, n)

import os
KVFLAGS = os.environ.get('KVFLAGS', 'nt')
SLOT = 32768
NSLOT = 4
SCR = NSLOT * SLOT
LDS_K2 = SCR + 4096

vTID, vLANE, vG, vI = V(0), V(1), V(2), V(3)
vT = [V(4 + k) for k in range(12)]
vDMA = [V(16 + k) for k in range(8)]
vPh, vPh2, vPh3, vRB512, vRB8192 = V(24), V(25), V(26), V(27), V(28)
vBP16, vBP32 = V(29), V(30)
vM = [V(31 + p) for p in range(3)]
vL = [V(34 + p) for p in range(3)]
vMC = [V(37 + p) for p in range(3)]
ADDR0 = 40
SBASE = 72
STBASE = 216
SMT = 240
QACC = 64
XF0 = 0
QF0 = 0
OACC0 = 0
FR0 = 192; NFR = 16

sW, sWL, sC, sTMP = "s28", "s29", "s30", "s31"
SRD_K, SRD_V, SRD_W, SRD_X, SRD_O = "s[8:11]", "s[12:15]", "s[16:19]", "s[20:23]", "s[24:27]"

def accQ(p, sp, u): return V(QACC + ((p * 8 + sp) * 2 + u) * 4, 4)
def xf(p, K): return A(XF0 + (K * 3 + p) * 4, 4)
def qf(p, s): return A(QF0 + (p * 8 + s) * 4, 4)
def oacc(p, t): return A(OACC0 + (p * 16 + t) * 4, 4)
def sreg(p, c, kt):
    return V(SBASE + ((p * 8 + c) * 4 + kt) * 2, 2)
def sregX(c): return V(SBASE + 128 + c * 2, 2)
def preg(p, c, ks): return V(SBASE + ((p * 8 + c) * 4 + 2 * ks) * 2, 4)

class K2:
    def __init__(self, name="attn_kernel", lookahead=6, fill_rate=2, stamps=False):
        self.a = Asm(); self.name = name
        self.stamps = stamps; self.nstamp = 0
        self.fr_next = 0
        self.fillers = []
        self.dmaq = []; self.mf_count = 0; self.dma_every = 6
        self.lookahead = lookahead
        self.fill_rate = fill_rate

    def stamp(self):
        if not self.stamps: return
        a = self.a
        a.raw("s_memtime s[44:45]"); a.raw("s_waitcnt lgkmcnt(0)"); a.lgkm = []
        a.raw(f"s_mov_b32 s{46 + self.nstamp}, s44"); self.nstamp += 1

    def dump_stamps(self):
        if not self.stamps: return
        a = self.a
        self.stamp()
        a.salu("s_lshl_b32 s3, s2, 2"); a.salu(f"s_add_u32 s3, s3, {sW}"); a.salu("s_lshl_b32 s3, s3, 7")
        a.salu("s_add_u32 s3, s3, 20971520")
        a.salu("s_mov_b32 s72, s40"); a.salu("s_and_b32 s73, s41, 0xffff"); a.salu("s_mov_b32 s74, 268435456"); a.salu("s_mov_b32 s75, 0x00020000")
        a.valu("v_mov_b32", vT[0], "s3")
        for k in range(self.nstamp):
            a.valu("v_mov_b32", vT[1], f"s{46 + k}")
            a.buf_store(vT[1], vT[0], "s[72:75]", off=4 * k)
        a.wait(vmcnt=0)

    def newfrag(self):
        f = A(FR0 + 4 * self.fr_next, 4); self.fr_next = (self.fr_next + 1) % NFR
        return f

    def prologue(self):
        a = self.a
        a.salu("s_cmp_ge_u32 s2, 256")
        a.salu("s_cbranch_scc1 L_k2_end")
        a.salu("s_load_dwordx2 s[40:41], s[0:1], 96")
        a.salu("s_lshr_b32 s4, s2, 7")
        a.salu("s_mul_i32 s5, s4, 40")
        a.salu("s_add_u32 s0, s0, s5")
        a.salu("s_addc_u32 s1, s1, 0")
        a.salu("s_load_dwordx8 s[32:39], s[0:1], 0")
        a.salu("s_and_b32 s6, s2, 15")
        a.salu("s_lshr_b32 s7, s2, 4")
        a.salu("s_and_b32 s7, s7, 7")
        a.salu("s_mul_i32 s43, s2, 1")
        a.salu("s_lshr_b32 s43, s43, 0")
        a.salu("s_and_b32 s43, s43, 7")
        a.valu("v_and_b32", vLANE, "63", vTID)
        a.valu("v_lshrrev_b32", vT[0], "6", vTID)
        a.raw("s_nop 1", 2)
        a.raw(f"v_readfirstlane_b32 {sW}, {vT[0]}")
        a.valu("v_lshrrev_b32", vG, "4", vLANE)
        a.valu("v_and_b32", vI, "15", vLANE)
        a.raw("s_nop 3", 4)
        a.salu(f"s_lshl_b32 {sWL}, {sW}, 13")
        a.salu(f"s_mov_b32 {sC}, 0x{f32bits(LOG2E/16.0):08x}")
        a.salu("s_waitcnt lgkmcnt(0)")
        a.salu("s_lshl_b32 s5, s7, 4")
        a.salu("s_add_u32 s5, s5, s6")
        a.salu("s_lshl_b32 s5, s5, 18")
        a.salu("s_add_u32 s8, s34, s5"); a.salu("s_addc_u32 s9, s35, 0"); a.salu("s_and_b32 s9, s9, 0xffff")
        a.salu("s_mov_b32 s10, 262144"); a.salu("s_mov_b32 s11, 0x00020000")
        a.salu("s_add_u32 s12, s36, s5"); a.salu("s_addc_u32 s13, s37, 0"); a.salu("s_and_b32 s13, s13, 0xffff")
        a.salu("s_mov_b32 s14, 262144"); a.salu("s_mov_b32 s15, 0x00020000")
        a.salu("s_lshl_b32 s5, s6, 9")
        a.salu("s_add_u32 s16, s38, s5"); a.salu("s_addc_u32 s17, s39, 0"); a.salu("s_and_b32 s17, s17, 0xffff")
        a.salu("s_sub_u32 s18, 3670016, s5"); a.salu("s_mov_b32 s19, 0x00020000")
        a.salu("s_mul_i32 s5, s7, 129024")
        a.salu("s_add_u32 s20, s32, s5"); a.salu("s_addc_u32 s21, s33, 0"); a.salu("s_and_b32 s21, s21, 0xffff")
        a.salu("s_mov_b32 s22, 129024"); a.salu("s_mov_b32 s23, 0x00020000")
        a.salu("s_mul_i32 s5, s4, 9732096")
        a.salu("s_add_u32 s24, s40, s5"); a.salu("s_addc_u32 s25, s41, 0"); a.salu("s_and_b32 s25, s25, 0xffff")
        a.salu("s_mov_b32 s26, 9732096"); a.salu("s_mov_b32 s27, 0x00020000")
        for p in range(3):
            if p < 2:
                a.salu(f"s_lshl_b32 s5, {sW}, 5")
                a.salu(f"s_add_u32 s5, s5, {16*p}")
                a.valu("v_add_u32", vT[1], "s5", vI)
            else:
                a.valu("v_add_u32", vT[1], "128", vI)
            a.salu("s_movk_i32 s5, 896")
            a.valu("v_mul_lo_u32", vT[1], vT[1], "s5")
            a.valu("v_lshl_add_u32", vT[2 + p], vG, "4", vT[1])
        for K in range(14):
            for p in range(3):
                a.buf_load(xf(p, K), vT[2 + p], SRD_X, off=64 * K)
        a.valu("v_lshrrev_b32", vT[5], "5", vLANE)
        a.valu("v_and_b32", vT[6], "31", vLANE)
        a.valu("v_xor_b32", vPh, vT[6], vT[5])
        a.valu("v_lshlrev_b32", vT[7], "1", vT[5]); a.valu("v_xor_b32", vPh2, vT[6], vT[7])
        a.valu("v_lshlrev_b32", vT[7], "2", vT[5]); a.valu("v_xor_b32", vPh3, vT[6], vT[7])
        a.salu(f"s_lshl_b32 s5, {sW}, 4")
        a.valu("v_add_u32", vT[7], "s5", vT[5])
        a.valu("v_lshlrev_b32", vRB512, "9", vT[7])
        a.valu("v_lshlrev_b32", vRB8192, "13", vT[7])
        a.valu("v_xor_b32", vT[7], "16", vLANE); a.valu("v_lshlrev_b32", vBP16, "2", vT[7])
        a.valu("v_xor_b32", vT[7], "32", vLANE); a.valu("v_lshlrev_b32", vBP32, "2", vT[7])

    def dma_offsets(self, kind):
        a = self.a
        for n in range(8):
            if kind == 'K':
                a.valu("v_xor_b32", vT[8], str(2 * n), vPh); base, stride = vRB512, 512
            elif kind == 'V':
                a.valu("v_xor_b32", vT[8], str(((2 * n) & 7) << 1), vPh2); base, stride = vRB512, 512
            else:
                a.valu("v_xor_b32", vT[8], str(((2 * n) & 3) << 2), vPh3); base, stride = vRB8192, 8192
            a.valu("v_lshl_add_u32", vT[8], vT[8], "4", base)
            a.valu("v_add_u32", vDMA[n], str(2 * n * stride), vT[8])

    def dma_list(self, it):
        a = self.a
        if it < 7: kind, srd, soff = 'W', SRD_W, it * 64 * 8192
        elif it < 15: kind, srd, soff = 'K', SRD_K, (it - 7) * SLOT
        else: kind, srd, soff = 'V', SRD_V, (it - 15) * SLOT
        sreg_ = "s31" if it % 2 == 0 else "s42"
        out = []
        def head():
            if it in (0, 7, 15): self.dma_offsets(kind)
            if kind == 'W':
                a.salu(f"s_mov_b32 {sreg_}, {soff}")
            else:
                a.salu(f"s_add_u32 {sreg_}, s43, {soff // SLOT}")
                a.salu(f"s_and_b32 {sreg_}, {sreg_}, 7")
                a.salu(f"s_lshl_b32 {sreg_}, {sreg_}, 15")
        out.append(head)
        slot = (it % NSLOT) * SLOT
        for n in range(8):
            def f(n=n):
                a.set_m0(f"s_add_u32 m0, {sWL}, {slot + n * 1024}")
                a.dma(vDMA[n], srd, sreg_, KVFLAGS if kind != 'W' else '')
            out.append(f)
        return out

    def issue_dma(self, it):
        for f in self.dma_list(it): f()

    def addr_W(self):
        a = self.a
        a.valu("v_lshrrev_b32", vT[0], "2", vI)
        a.valu("v_and_b32", vT[1], "3", vI)
        a.valu("v_lshl_add_u32", vT[2], vG, "3", vT[0])
        a.valu("v_lshlrev_b32", vT[2], "9", vT[2])
        for v in range(4):
            a.valu("v_xor_b32", vT[3], str(v), vT[0])
            a.valu("v_lshl_add_u32", vT[3], vT[3], "2", vT[1])
            a.valu("v_lshl_add_u32", V(ADDR0 + v * 2), vT[3], "4", vT[2])
            a.valu("v_add_u32", V(ADDR0 + v * 2 + 1), "0x10000", V(ADDR0 + v * 2))
    def aW(self, v, half): return V(ADDR0 + v * 2 + half)

    def addr_K(self):
        a = self.a
        a.valu("v_lshlrev_b32", vT[2], "9", vI)
        a.salu(f"s_lshl_b32 s5, {sW}, 13")
        for v in range(4):
            a.valu("v_add_u32", vT[3], str(4 * v), vG)
            a.valu("v_xor_b32", vT[3], vT[3], vI)
            a.valu("v_lshl_add_u32", V(ADDR0 + v * 2), vT[3], "4", vT[2])
            a.valu("v_add_u32", V(ADDR0 + v * 2 + 1), "0x10000", V(ADDR0 + v * 2))
            a.valu("v_add_u32", V(ADDR0 + 8 + v * 2), "s5", V(ADDR0 + v * 2))
            a.valu("v_add_u32", V(ADDR0 + 8 + v * 2 + 1), "s5", V(ADDR0 + v * 2 + 1))
    def aK(self, v, half, x=False): return V(ADDR0 + (8 if x else 0) + v * 2 + half)

    def addr_V(self):
        a = self.a
        a.valu("v_lshrrev_b32", vT[0], "2", vI)
        a.valu("v_and_b32", vT[1], "3", vI)
        a.valu("v_lshl_add_u32", vT[2], vG, "2", vT[0])
        a.valu("v_and_b32", vT[4], "7", vT[2])
        a.valu("v_lshlrev_b32", vT[2], "9", vT[2])
        a.valu("v_and_b32", vT[5], "1", vT[1])
        a.valu("v_lshl_add_u32", vT[2], vT[5], "3", vT[2])
        a.valu("v_lshrrev_b32", vT[5], "1", vT[1])
        a.salu(f"s_lshl_b32 s5, {sW}, 13")
        for v in range(8):
            a.valu("v_xor_b32", vT[3], str(v), vT[4])
            a.valu("v_lshl_add_u32", vT[3], vT[3], "1", vT[5])
            a.valu("v_lshl_add_u32", V(ADDR0 + v * 2), vT[3], "4", vT[2])
            a.valu("v_add_u32", V(ADDR0 + v * 2 + 1), "0x10000", V(ADDR0 + v * 2))
            a.valu("v_add_u32", V(ADDR0 + 16 + v * 2), "s5", V(ADDR0 + v * 2))
            a.valu("v_add_u32", V(ADDR0 + 16 + v * 2 + 1), "s5", V(ADDR0 + v * 2 + 1))
    def aV(self, v, half, x=False): return V(ADDR0 + (16 if x else 0) + v * 2 + half)

    def run_jobs(self, jobs):
        a = self.a
        issued = 0
        n = len(jobs)
        for j in range(n):
            while issued < min(n, j + 1 + self.lookahead):
                for (dst, addr, off, tr) in jobs[issued][0]:
                    a.ds_read(dst, addr, off, tr)
                issued += 1
            for (D, Aop, Bop, C, k16) in jobs[j][1]:
                a.mfma(D, Aop, Bop, C, k16)
                self.pop_fillers(self.fill_rate)
                self.mf_count += 1
                if self.dmaq and self.mf_count % self.dma_every == 0:
                    self.dmaq.pop(0)()
        return

    def pop_fillers(self, k):
        for _ in range(k):
            if not self.fillers: return
            self.fillers.pop(0)()
    def drain_fillers(self):
        while self.fillers: self.fillers.pop(0)()

    def qproj(self, it):
        slot = it % NSLOT; half = slot >> 1; so = (slot & 1) * SLOT
        jobs = []
        for ks in range(2):
            K = 2 * it + ks
            for sp in range(8):
                for u in range(2):
                    f = self.newfrag()
                    rd = [(f.sub(2 * j, 2), self.aW(sp & 3, half), so + (32 * ks + 4 * j) * 512 + (sp >> 2) * 256 + 8 * u, True) for j in range(2)]
                    mm = [(accQ(p, sp, u), f, xf(p, K), None if K == 0 else accQ(p, sp, u), False) for p in range(3)]
                    jobs.append((rd, mm))
        self.run_jobs(jobs)

    def pack_q(self):
        a = self.a
        for p in range(3):
            for sp in range(8):
                q = qf(p, sp)
                for u in range(2):
                    ac = accQ(p, sp, u)
                    for hh in range(2):
                        t = V(SMT + (u * 2 + hh) % 4) if False else vT[8 + (u * 2 + hh) % 4]
                        a.valu("v_cvt_pk_bf16_f32", t, ac.sub(2 * hh), ac.sub(2 * hh + 1))
                        a.ins(f"v_accvgpr_write_b32 {q.sub(u*2+hh)}, {t}", 'valu', reads=t.ids(), writes=q.sub(u * 2 + hh).ids())

    def qk(self, it):
        c = it - 7
        slot = it % NSLOT; half = slot >> 1; so = (slot & 1) * SLOT
        a = self.a
        for kt in range(5):
            jobs = []
            for s in range(8):
                f = self.newfrag()
                if kt < 4:
                    rd = [(f, self.aK(s & 3, half), so + kt * 8192 + (s >> 2) * 256, False)]
                    mm = [(V(STBASE + ((kt & 1) * 2 + p) * 4, 4), f, qf(p, s), None if s == 0 else V(STBASE + ((kt & 1) * 2 + p) * 4, 4), False) for p in range(2)]
                else:
                    rd = [(f, self.aK(s & 3, half, True), so + (s >> 2) * 256, False)]
                    mm = [(V(STBASE + 16, 4), f, qf(2, s), None if s == 0 else V(STBASE + 16, 4), False)]
                jobs.append((rd, mm))
            self.run_jobs(jobs)
            tiles = [(V(STBASE + ((kt & 1) * 2 + p) * 4, 4), p, sreg(p, c, kt)) for p in range(2)] if kt < 4 else [(V(STBASE + 16, 4), 2, sregX(c))]
            for (st, p, dst) in tiles:
                first = (c == 0 and (kt == 0 or kt == 4))
                def mk(st=st, p=p, dst=dst, first=first):
                    return [
                        (lambda: a.valu("v_max_f32", vM[p], st.sub(0), st.sub(1))) if first else (lambda: a.valu("v_max3_f32", vM[p], vM[p], st.sub(0), st.sub(1))),
                        lambda: a.valu("v_max3_f32", vM[p], vM[p], st.sub(2), st.sub(3)),
                        lambda: a.valu("v_cvt_pk_bf16_f32", dst.sub(0), st.sub(0), st.sub(1)),
                        lambda: a.valu("v_cvt_pk_bf16_f32", dst.sub(1), st.sub(2), st.sub(3)),
                    ]
                self.fillers += mk()

    def xlane(self, op, reg):
        a = self.a
        a.bpermute(vT[0], vBP16, reg); a.valu(op, reg, reg, vT[0])
        a.bpermute(vT[0], vBP32, reg); a.valu(op, reg, reg, vT[0])

    def softmax_ops(self, c):
        a = self.a
        ops = []
        regs = [(preg(p, c, ks).sub(k), p) for p in range(2) for ks in range(2) for k in range(4)] + [(sregX(c).sub(k), 2) for k in range(2)]
        for n, (s, p) in enumerate(regs):
            t0, t1 = V(SMT + (n % 4) * 4), V(SMT + (n % 4) * 4 + 1)
            e0, e1 = V(SMT + (n % 4) * 4 + 2), V(SMT + (n % 4) * 4 + 3)
            ops += [
                lambda s=s, t0=t0: a.valu("v_lshlrev_b32", t0, "16", s),
                lambda s=s, t1=t1: a.valu("v_and_b32", t1, "0xffff0000", s),
                lambda p=p, t0=t0: a.valu_txt(f"v_fma_f32 {t0}, {t0}, {sC}, -{vMC[p]}", t0.ids() + vMC[p].ids(), t0.ids()),
                lambda p=p, t1=t1: a.valu_txt(f"v_fma_f32 {t1}, {t1}, {sC}, -{vMC[p]}", t1.ids() + vMC[p].ids(), t1.ids()),
                lambda t0=t0, e0=e0: a.valu("v_exp_f32", e0, t0, trans=True),
                lambda t1=t1, e1=e1: a.valu("v_exp_f32", e1, t1, trans=True),
                lambda p=p, e0=e0: a.valu("v_add_f32", vL[p], vL[p], e0),
                lambda p=p, e1=e1: a.valu("v_add_f32", vL[p], vL[p], e1),
                lambda s=s, e0=e0, e1=e1: a.valu("v_cvt_pk_bf16_f32", s, e0, e1),
            ]
        return ops

    def pv(self, it):
        c = it - 15
        slot = it % NSLOT; half = slot >> 1; so = (slot & 1) * SLOT
        jobs = []
        for ks in range(2):
            for t in range(16):
                f = self.newfrag()
                rd = [(f.sub(2 * j, 2), self.aV(t & 7, half), so + (32 * ks + 16 * j) * 512 + (t >> 3) * 256, True) for j in range(2)]
                first = (c == 0 and ks == 0)
                mm = [(oacc(p, t), f, preg(p, c, ks), None if first else oacc(p, t), False) for p in range(2)]
                jobs.append((rd, mm))
        for t in range(16):
            f = self.newfrag()
            rd = [(f.sub(0, 2), self.aV(t & 7, half, True), so + (t >> 3) * 256, True)]
            mm = [(oacc(2, t), f.sub(0, 2), sregX(c), None if c == 0 else oacc(2, t), True)]
            jobs.append((rd, mm))
        self.run_jobs(jobs)

    def epilogue(self):
        a = self.a
        for p in range(3): self.xlane("v_add_f32", vL[p])
        for p in range(2): a.valu("v_rcp_f32", vL[p], vL[p], trans=True)
        a.salu("s_mul_i32 s5, s7, 144")
        a.salu(f"s_lshl_b32 s3, {sW}, 5")
        a.salu("s_add_u32 s3, s3, s5")
        a.salu("s_lshl_b32 s4, s6, 9")
        for p in range(2):
            a.valu("v_add_u32", vT[1], "s3", vI)
            if p: a.valu("v_add_u32", vT[1], "16", vT[1])
            a.salu("s_movk_i32 s5, 8448") if False else a.salu("s_mov_b32 s42, 8448")
            a.valu("v_mul_lo_u32", vT[1], vT[1], "s42")
            a.valu("v_lshl_add_u32", vT[1], vG, "3", vT[1])
            a.valu("v_add_u32", vT[2 + p], "s4", vT[1])
        a.barrier()
        STG0 = 65536
        a.salu(f"s_mul_i32 s3, {sW}, 16896"); a.salu(f"s_add_u32 s3, s3, {STG0}")
        a.salu("s_movk_i32 s5, 528")
        a.valu("v_mul_lo_u32", vT[8], vI, "s5"); a.valu("v_lshl_add_u32", vT[8], vG, "3", vT[8]); a.valu("v_add_u32", vT[8], "s3", vT[8])
        for p in range(2):
            for t in range(16):
                o = oacc(p, t); base = SMT + (t % 2) * 6
                for r in range(4):
                    a.ins(f"v_accvgpr_read_b32 {V(base+r)}, {o.sub(r)}", 'valu', reads=o.sub(r).ids(), writes=V(base + r).ids())
                for r in range(4):
                    a.valu("v_mul_f32", V(base + r), V(base + r), vL[p])
                a.valu("v_cvt_pk_bf16_f32", V(base + 4), V(base), V(base + 1))
                a.valu("v_cvt_pk_bf16_f32", V(base + 5), V(base + 2), V(base + 3))
                a.ds_write(vT[8], V(base + 4, 2), off=p * 16 * 528 + t * 32)
        a.wait(lgkmcnt=0)
        a.valu("v_lshrrev_b32", vT[9], "5", vLANE); a.valu("v_and_b32", vT[10], "31", vLANE)
        a.valu("v_mul_lo_u32", vT[8], vT[9], "s5"); a.valu("v_lshl_add_u32", vT[8], vT[10], "4", vT[8]); a.valu("v_add_u32", vT[8], "s3", vT[8])
        a.salu("s_mul_i32 s5, s7, 144"); a.salu(f"s_lshl_b32 s3, {sW}, 5"); a.salu("s_add_u32 s3, s3, s5")
        a.valu("v_add_u32", vT[11], "s3", vT[9]); a.salu("s_mov_b32 s42, 8448"); a.valu("v_mul_lo_u32", vT[11], vT[11], "s42")
        a.valu("v_lshl_add_u32", vT[11], vT[10], "4", vT[11]); a.salu("s_lshl_b32 s4, s6, 9"); a.valu("v_add_u32", vT[11], "s4", vT[11])
        for n in range(16):
            a.ds_read(V(SBASE + 4 * n, 4), vT[8], off=n * 1056)
        for n in range(16):
            a.buf_store(V(SBASE + 4 * n, 4), vT[11], SRD_O)
            if n < 15: a.valu("v_add_u32", vT[11], str(2 * 8448), vT[11])
        self.stamp()
        a.valu("v_lshlrev_b32", vT[1], "4", vLANE)
        a.salu(f"s_lshl_b32 s3, {sW}, 14")
        a.valu("v_add_u32", vT[1], "s3", vT[1])
        for t in range(16):
            o = oacc(2, t); base = SMT + (t % 3) * 4
            for r in range(4):
                a.ins(f"v_accvgpr_read_b32 {V(base+r)}, {o.sub(r)}", 'valu', reads=o.sub(r).ids(), writes=V(base + r).ids())
            a.ds_write(vT[1], V(base, 4), off=t * 1024)
        a.valu("v_lshlrev_b32", vT[4], "2", vLANE)
        a.valu("v_add_u32", vT[4], str(SCR), vT[4])
        a.salu(f"s_lshl_b32 s3, {sW}, 8")
        a.valu("v_add_u32", vT[5], "s3", vT[4])
        a.ds_write(vT[5], vL[2], off=1024)
        a.wait(lgkmcnt=0)
        a.barrier()
        a.valu("v_lshlrev_b32", vT[1], "4", vLANE)
        a.salu(f"s_lshl_b32 s3, {sW}, 12")
        a.valu("v_add_u32", vT[1], "s3", vT[1])
        for ww in range(4):
            a.ds_read(V(SMT + ww), vT[4], off=1024 + ww * 256)
        a.valu("v_add_f32", V(SMT), V(SMT), V(SMT + 1)); a.valu("v_add_f32", V(SMT + 2), V(SMT + 2), V(SMT + 3))
        a.valu("v_add_f32", V(SMT), V(SMT), V(SMT + 2))
        a.valu("v_rcp_f32", vT[6], V(SMT), trans=True)
        a.salu("s_mul_i32 s5, s7, 144")
        a.salu("s_add_u32 s5, s5, 128")
        a.valu("v_add_u32", vT[7], "s5", vI)
        a.salu("s_mov_b32 s42, 8448")
        a.valu("v_mul_lo_u32", vT[7], vT[7], "s42")
        a.valu("v_lshl_add_u32", vT[7], vG, "3", vT[7])
        a.salu("s_lshl_b32 s4, s6, 9"); a.salu(f"s_lshl_b32 s3, {sW}, 7"); a.salu("s_add_u32 s4, s4, s3")
        a.valu("v_add_u32", vT[7], "s4", vT[7])
        for tt in range(4):
            bb = SBASE + tt * 16
            for ww in range(4):
                a.ds_read(V(bb + 4 * ww, 4), vT[1], off=ww * 16384 + tt * 1024)
        for tt in range(4):
            bb = SBASE + tt * 16
            for r in range(4):
                a.valu("v_add_f32", V(bb + r), V(bb + r), V(bb + 4 + r))
                a.valu("v_add_f32", V(bb + 8 + r), V(bb + 8 + r), V(bb + 12 + r))
                a.valu("v_add_f32", V(bb + r), V(bb + r), V(bb + 8 + r))
                a.valu("v_mul_f32", V(bb + r), V(bb + r), vT[6])
            a.valu("v_cvt_pk_bf16_f32", V(bb + 4), V(bb), V(bb + 1))
            a.valu("v_cvt_pk_bf16_f32", V(bb + 5), V(bb + 2), V(bb + 3))
            a.buf_store(V(bb + 4, 2), vT[7], SRD_O, off=32 * tt)

    def build(self):
        a = self.a
        self.prologue()
        for it in range(3): self.issue_dma(it)
        self.addr_W()
        NIT = 23
        for it in range(NIT):
            ahead = min(it + 2, NIT - 1) - it
            a.wait(vmcnt=8 * ahead)
            if it == 15:
                pass
            a.barrier()
            self.stamp()
            if it + 3 < NIT: self.dmaq = self.dma_list(it + 3)
            self.dma_every = {0: 10, 1: 7, 2: 8}[0 if it < 7 else (1 if it < 15 else 2)]
            if it < 7:
                self.qproj(it)
                if it == 6:
                    self.pack_q(); self.addr_K()
            elif it < 15:
                self.qk(it)
                if it == 14:
                    self.drain_fillers()
                    for p in range(3): self.xlane("v_max_f32", vM[p])
                    a.valu("v_lshlrev_b32", vT[4], "2", vLANE)
                    a.valu("v_add_u32", vT[4], str(SCR), vT[4])
                    a.salu(f"s_lshl_b32 s3, {sW}, 8")
                    a.valu("v_add_u32", vT[5], "s3", vT[4])
                    a.ds_write(vT[5], vM[2], off=0)
                    a.wait(lgkmcnt=0)
                    self.addr_V()
            else:
                if it == 15:
                    a.valu("v_lshlrev_b32", vT[4], "2", vLANE)
                    a.valu("v_add_u32", vT[4], str(SCR), vT[4])
                    for ww in range(4): a.ds_read(V(SMT + ww), vT[4], off=ww * 256)
                    a.valu("v_max_f32", V(SMT), V(SMT), V(SMT + 1)); a.valu("v_max_f32", V(SMT + 2), V(SMT + 2), V(SMT + 3))
                    a.valu("v_max_f32", vM[2], V(SMT), V(SMT + 2))
                    for p in range(3):
                        a.valu("v_mul_f32", vMC[p], sC, vM[p])
                        a.valu("v_mov_b32", vL[p], "0")
                    self.fillers += self.softmax_ops(0); self.drain_fillers()
                if it + 1 < NIT: self.fillers += self.softmax_ops(it + 1 - 15)
                self.pv(it)
                self.drain_fillers()
            while self.dmaq: self.dmaq.pop(0)()
        self.stamp()
        self.epilogue()
        self.dump_stamps()
        return a
```

```python
from asmlib import *
V = lambda b, n=1: Reg('v', b, n)

NST = 4
STG = 32768
LDS_K3 = NST * STG
NCH = 32

vTID, vLANE, vG, vI = V(0), V(1), V(2), V(3)
vT = [V(4 + k) for k in range(10)]
vDO = [V(14 + k) for k in range(4)]
vDW = [V(18 + k) for k in range(4)]
vAW = [[V(22), V(23)], [V(24), V(25)]]
vAO = [[V(26 + 2 * ks), V(27 + 2 * ks)] for ks in range(4)]
vOFF = [V(34), V(35)]
ACC = 36
FRA = 52
FRB = 84
vPF, vPFD = V(116), V(117)
NVGPR = 120
import os
PFD = int(os.environ.get("PFD", "0"))

sW = "s28"
SRD_O, SRD_W, SRD_OUT = "s[8:11]", "s[12:15]", "s[16:19]"
sKO, sKW, sCNT, sWL = "s20", "s21", "s22", "s23"
SRD_P = "s[24:27]"; sPF, sPFS = "s29", "s30"

class K3:
    def __init__(self):
        self.a = Asm()

    def build(self):
        a = self.a
        a.salu("s_cmp_ge_u32 s2, 256")
        a.salu("s_cbranch_scc1 L_k3_end")
        a.salu("s_load_dwordx2 s[40:41], s[0:1], 96")
        a.salu("s_load_dwordx2 s[42:43], s[0:1], 80")
        a.salu("s_and_b32 s3, s2, 7"); a.salu("s_lshl_b32 s3, s3, 5"); a.salu("s_lshr_b32 s5, s2, 3"); a.salu("s_add_u32 s3, s3, s5")
        a.salu("s_cmp_ge_u32 s3, 252")
        a.salu("s_cbranch_scc1 L_k3_end")
        a.salu("s_cmp_ge_u32 s3, 126")
        a.salu("s_cselect_b32 s4, 1, 0")
        a.salu("s_mul_i32 s5, s4, 126")
        a.salu("s_sub_u32 s5, s3, s5")
        a.salu("s_mul_hi_u32 s6, s5, 613566757")
        a.salu("s_mul_i32 s7, s6, 7")
        a.salu("s_sub_u32 s7, s5, s7")
        a.salu("s_mul_i32 s3, s4, 40")
        a.salu("s_add_u32 s3, s3, 32")
        a.salu("s_load_dwordx2 s[44:45], s[0:1], s3")
        a.valu("v_and_b32", vLANE, "63", vTID)
        a.valu("v_lshrrev_b32", vT[0], "6", vTID)
        a.raw("s_nop 1", 2)
        a.raw(f"v_readfirstlane_b32 {sW}, {vT[0]}")
        a.valu("v_lshrrev_b32", vG, "4", vLANE)
        a.valu("v_and_b32", vI, "15", vLANE)
        a.raw("s_nop 3", 4)
        a.salu(f"s_lshl_b32 {sWL}, {sW}, 12")
        a.salu("s_waitcnt lgkmcnt(0)")
        a.salu("s_mul_i32 s3, s4, 9732096")
        a.salu("s_mul_i32 s5, s6, 540672")
        a.salu("s_add_u32 s3, s3, s5")
        a.salu("s_add_u32 s8, s40, s3"); a.salu("s_addc_u32 s9, s41, 0"); a.salu("s_and_b32 s9, s9, 0xffff")
        a.salu("s_mov_b32 s10, 540672"); a.salu("s_mov_b32 s11, 0x00020000")
        a.salu("s_lshl_b32 s3, s7, 7")
        a.salu("s_add_u32 s12, s44, s3"); a.salu("s_addc_u32 s13, s45, 0"); a.salu("s_and_b32 s13, s13, 0xffff")
        a.salu("s_sub_u32 s14, 3670016, s3"); a.salu("s_mov_b32 s15, 0x00020000")
        a.salu("s_mov_b32 s16, s42"); a.salu("s_and_b32 s17, s43, 0xffff")
        a.salu("s_mov_b32 s18, 2064384"); a.salu("s_mov_b32 s19, 0x00020000")
        a.valu("v_lshrrev_b32", vT[0], "3", vLANE)
        a.valu("v_lshrrev_b32", vT[1], "4", vLANE)
        a.valu("v_and_b32", vT[2], "7", vLANE)
        a.valu("v_and_b32", vT[6], "15", vLANE)
        for n in range(4):
            a.salu(f"s_lshl_b32 s3, {sW}, 4")
            a.valu("v_add_u32", vT[3], "s3", vT[1])
            if n: a.valu("v_add_u32", vT[3], str(4 * n), vT[3])
            a.valu("v_add_u32", vT[4], str(4 * n), vT[1])
            a.valu("v_xor_b32", vT[4], vT[4], vT[6])
            a.salu("s_movk_i32 s5, 8448")
            a.valu("v_mul_lo_u32", vT[5], vT[3], "s5")
            a.valu("v_lshl_add_u32", vDO[n], vT[4], "4", vT[5])
            a.salu(f"s_lshl_b32 s3, {sW}, 5")
            a.valu("v_add_u32", vT[3], "s3", vT[0])
            if n: a.valu("v_add_u32", vT[3], str(8 * n), vT[3])
            a.valu("v_and_b32", vT[4], "1", vT[1])
            if n & 1: a.valu("v_or_b32", vT[4], "2", vT[4])
            a.valu("v_lshrrev_b32", vT[5], "1", vT[2])
            a.valu("v_xor_b32", vT[4], vT[4], vT[5])
            a.valu("v_and_b32", vT[5], "1", vT[2])
            a.valu("v_lshl_add_u32", vT[4], vT[4], "1", vT[5])
            a.salu("s_movk_i32 s5, 896")
            a.valu("v_mul_lo_u32", vT[5], vT[3], "s5")
            a.valu("v_lshl_add_u32", vDW[n], vT[4], "4", vT[5])
        a.valu("v_lshrrev_b32", vT[0], "2", vI)
        a.valu("v_and_b32", vT[1], "3", vI)
        a.valu("v_lshl_add_u32", vT[2], vG, "3", vT[0])
        a.valu("v_lshlrev_b32", vT[2], "7", vT[2])
        a.valu("v_lshrrev_b32", vT[3], "1", vT[1]); a.valu("v_lshl_add_u32", vT[2], vT[3], "4", vT[2])
        a.valu("v_and_b32", vT[3], "1", vT[1]); a.valu("v_lshl_add_u32", vT[2], vT[3], "3", vT[2])
        a.valu("v_add_u32", vT[2], "16384", vT[2])
        a.valu("v_lshrrev_b32", vT[3], "1", vT[0]); a.valu("v_and_b32", vT[3], "1", vT[3])
        a.valu("v_and_b32", vT[4], "1", vG); a.valu("v_lshl_or_b32", vT[3], vT[4], "1", vT[3])
        a.salu(f"s_and_b32 s3, {sW}, 1"); a.salu("s_lshl_b32 s3, s3, 1")
        for ntp in range(2):
            a.valu("v_xor_b32", vT[4], "s3", vT[3])
            if ntp: a.valu("v_xor_b32", vT[4], "1", vT[4])
            a.valu("v_lshl_add_u32", vAW[ntp][0], vT[4], "5", vT[2])
            a.valu("v_add_u32", vAW[ntp][1], "0x10000", vAW[ntp][0])
        a.salu(f"s_lshr_b32 s3, {sW}, 1"); a.salu("s_lshl_b32 s3, s3, 5")
        a.valu("v_add_u32", vT[2], "s3", vI); a.valu("v_lshlrev_b32", vT[2], "8", vT[2])
        for ks in range(4):
            a.valu("v_add_u32", vT[4], str(4 * ks), vG)
            a.valu("v_xor_b32", vT[4], vT[4], vI)
            a.valu("v_lshl_add_u32", vAO[ks][0], vT[4], "4", vT[2])
            a.valu("v_add_u32", vAO[ks][1], "0x10000", vAO[ks][0])
        a.salu(f"s_cmp_lt_u32 {sW}, 2")
        a.salu("s_cselect_b32 s24, s8, s12"); a.salu("s_cselect_b32 s25, s9, s13")
        a.salu("s_cselect_b32 s26, s10, s14"); a.salu("s_mov_b32 s27, 0x00020000")
        a.salu(f"s_mov_b32 s5, {128 * 896}")
        a.salu(f"s_cselect_b32 {sPFS}, 256, s5")
        a.salu(f"s_mul_i32 {sPF}, {sPFS}, {NST - 1 + PFD}")
        a.salu(f"s_lshl_b32 s3, {sW}, 5")
        a.valu("v_lshrrev_b32", vT[0], "1", vLANE); a.valu("v_add_u32", vT[0], "s3", vT[0]); a.salu("s_movk_i32 s5, 8448"); a.valu("v_mul_lo_u32", vT[0], vT[0], "s5")
        a.valu("v_and_b32", vT[1], "1", vLANE); a.valu("v_lshl_add_u32", vT[0], vT[1], "7", vT[0])
        a.salu(f"s_sub_u32 s3, {sW}, 2"); a.salu("s_lshl_b32 s3, s3, 6")
        a.valu("v_add_u32", vT[1], "s3", vLANE); a.salu("s_movk_i32 s5, 896"); a.valu("v_mul_lo_u32", vT[1], vT[1], "s5")
        a.raw("s_nop 1", 2)
        a.valu_txt(f"v_cndmask_b32 {vPF}, {vT[1]}, {vT[0]}, vcc" if False else f"v_mov_b32 {vPF}, {vT[0]}", vT[0].ids(), vPF.ids())
        a.salu(f"s_cmp_lt_u32 {sW}, 2")
        a.salu("s_cbranch_scc1 L_k3_pfsel")
        a.valu("v_mov_b32", vPF, vT[1])
        a.label("L_k3_pfsel")
        for r in range(16): a.valu("v_mov_b32", V(ACC + r), "0")
        a.salu(f"s_mov_b32 {sKO}, 0"); a.salu(f"s_mov_b32 {sKW}, 0")
        for st in range(NST - 1): self.dma(st)
        a.salu(f"s_mov_b32 {sCNT}, 0")
        a.raw("s_nop 7", 8)
        a.label("L_k3_loop")
        for st in range(NST):
            a.wait(vmcnt=(9 if PFD > 0 else 8) * (NST - 2))
            a.barrier()
            self.compute(st, (st + NST - 1) % NST)
        a.salu(f"s_add_u32 {sCNT}, {sCNT}, 1")
        a.salu(f"s_cmp_lt_u32 {sCNT}, {NCH // NST}")
        a.raw("s_nop 7", 8)
        a.salu("s_cbranch_scc1 L_k3_loop")
        a.raw("s_nop 7", 8)
        a.salu(f"s_lshr_b32 s3, {sW}, 1"); a.salu("s_lshl_b32 s3, s3, 5"); a.salu("s_lshl_b32 s5, s6, 6"); a.salu("s_add_u32 s3, s3, s5")
        a.valu("v_add_u32", vT[0], "s3", vI)
        a.salu("s_movk_i32 s5, 1792")
        a.valu("v_mul_lo_u32", vT[0], vT[0], "s5")
        a.salu("s_mul_i32 s3, s4, 896"); a.salu("s_lshl_b32 s5, s7, 7"); a.salu("s_add_u32 s3, s3, s5")
        a.salu(f"s_and_b32 s5, {sW}, 1"); a.salu("s_lshl_b32 s5, s5, 6"); a.salu("s_add_u32 s3, s3, s5")
        a.valu("v_add_u32", vT[0], "s3", vT[0])
        a.valu("v_lshl_add_u32", vOFF[0], vG, "3", vT[0])
        a.valu("v_add_u32", vOFF[1], str(16 * 1792), vOFF[0])
        for ntp in range(2):
            for mtp in range(2):
                d = V(ACC + (ntp * 2 + mtp) * 4, 4)
                t = V(FRA + (ntp * 2 + mtp) * 2, 2)
                a.valu("v_cvt_pk_bf16_f32", t.sub(0), d.sub(0), d.sub(1))
                a.valu("v_cvt_pk_bf16_f32", t.sub(1), d.sub(2), d.sub(3))
                a.buf_store(t, vOFF[mtp], SRD_OUT, off=ntp * 32)
        return a

    def dma_list(self, st):
        a = self.a
        out = []
        for n in range(4):
            def f(n=n):
                a.set_m0(f"s_add_u32 m0, {sWL}, {st * STG + n * 1024}")
                a.dma(vDO[n], SRD_O, sKO, os.environ.get("K3FO","nt"))
            if not os.environ.get("K3NOO"): out.append(f)
        for n in range(4):
            def f(n=n):
                a.set_m0(f"s_add_u32 m0, {sWL}, {st * STG + 16384 + n * 1024}")
                a.dma(vDW[n], SRD_W, sKW, os.environ.get("K3FW","nt"))
            if not os.environ.get("K3NOW"): out.append(f)
        def fin():
            if PFD > 0:
                a.ins(f"buffer_load_dword {vPFD}, {vPF}, {SRD_P}, {sPF} offen", 'dma', reads=vPF.ids())
                a.salu(f"s_add_u32 {sPF}, {sPF}, {sPFS}")
            a.salu(f"s_add_u32 {sKO}, {sKO}, 256")
            a.salu(f"s_add_u32 {sKW}, {sKW}, {128 * 896}")
        out.append(fin)
        return out

    def dma(self, st):
        for f in self.dma_list(st): f()

    def compute(self, st, dst):
        a = self.a
        half = st >> 1; base = (st & 1) * STG
        dl = self.dma_list(dst)
        if os.environ.get("K3NODMA"): dl = dl[-1:]
        if os.environ.get("K3NOCOMP"):
            while dl: dl.pop(0)()
            return
        for ks in range(4):
            for ntp in range(2):
                f = V(FRA + (ks * 2 + ntp) * 4, 4)
                for j in range(2):
                    a.ds_read(f.sub(2 * j, 2), vAW[ntp][half], base + (32 * ks + 4 * j) * 128, tr=True)
            for mtp in range(2):
                a.ds_read(V(FRB + (ks * 2 + mtp) * 4, 4), vAO[ks][half], base + mtp * 4096)
            if dl: dl.pop(0)();
            if dl: dl.pop(0)()
        for ks in range(4):
            for ntp in range(2):
                for mtp in range(2):
                    d = V(ACC + (ntp * 2 + mtp) * 4, 4)
                    a.mfma(d, V(FRA + (ks * 2 + ntp) * 4, 4), V(FRB + (ks * 2 + mtp) * 4, 4), d)
                if dl: dl.pop(0)()
        while dl: dl.pop(0)()
```
